```python
import torch

def _softmax(x, axis=-1):
    return torch.softmax(x, dim=axis)
def _gelu(x):
    return torch.nn.functional.gelu(x, approximate="tanh")
def _silu(x):
    return torch.nn.functional.silu(x)
def _sigmoid(x):
    return torch.sigmoid(x)
def _layernorm(x, axis=-1, eps=1e-5):
    m = x.mean(dim=axis, keepdim=True)
    v = x.var(dim=axis, keepdim=True, unbiased=False)
    return (x - m) / torch.sqrt(v + eps)
def _scatter_add(tgt, idx, src, axis=0):
    return tgt.clone().index_add_(axis, idx, src)
def _segment_sum(src, seg, n):
    out = torch.zeros((n,) + src.shape[1:], dtype=src.dtype)
    return out.index_add_(0, seg, src)
def _pad(x, pw):
    flat = tuple(v for pair in reversed(pw) for v in pair)
    return torch.nn.functional.pad(x, flat)

kernel_name = 'sequential_preLN__sliding_block__glu_gated_swiglu__prompt'

def setup_inputs():

    _w = (lambda a: (lambda t: t.to(torch.bfloat16) if t.is_floating_point() else t)(torch.as_tensor(a)))
    def _A_setup():
        B, S, D = 1, 2048, 1024
        return {
            "x": _w((lambda *s: torch.randn(*s, dtype=torch.bfloat16) * 0.05)(B, S, D)),
            "wqkv": _w((lambda *s: torch.randn(*s, dtype=torch.bfloat16) * 0.05)(D, 3 * D)),
            "wo": _w((lambda *s: torch.randn(*s, dtype=torch.bfloat16) * 0.05)(D, D)),
        }
    _A_in = _A_setup()

    def _B_setup():
        B, S, D, F = 1, 2048, 1024, 3584
        return {
            "x": _w((lambda *s: torch.randn(*s, dtype=torch.bfloat16) * 0.05)(B, S, D)),
            "w1": _w((lambda *s: torch.randn(*s, dtype=torch.bfloat16) * 0.8)(D, F) * (2.0 / D) ** 0.5),
            "w3": _w((lambda *s: torch.randn(*s, dtype=torch.bfloat16) * 0.8)(D, F) * (2.0 / D) ** 0.5),
            "w2": _w((lambda *s: torch.randn(*s, dtype=torch.bfloat16) * 0.8)(F, D) * (2.0 / F) ** 0.5),
        }
    _B_in = _B_setup()

    return {
        "A_x": _A_in["x"],
        "A_wqkv": _A_in["wqkv"],
        "A_wo": _A_in["wo"],
        "B_x": _B_in["x"],
        "B_w1": _B_in["w1"],
        "B_w3": _B_in["w3"],
        "B_w2": _B_in["w2"],
    }

def reference(A_x, A_wqkv, A_wo, B_x, B_w1, B_w3, B_w2):
    def _A_ref(x, wqkv, wo):
        B, S, D = x.shape
        H = 32; Dh = D // H; W = 256
        qkv = (lambda x, *d: x.permute(*d))((x @ wqkv).reshape(B, S, 3, H, Dh), 2, 0, 3, 1, 4)
        q, k, v = qkv[0], qkv[1], qkv[2]
        scores = torch.einsum("bhqd,bhkd->bhqk", q, k) * (Dh ** -0.5)
        idx = torch.arange(S)
        mask = (idx[:, None] - idx[None, :] >= 0) & (idx[:, None] - idx[None, :] < W)
        scores = torch.where(mask[None, None], scores, -1e9)
        p = _softmax(scores, axis=-1)
        o = torch.einsum("bhqk,bhkd->bhqd", p, v)
        return (lambda x, *d: x.permute(*d))(o, 0, 2, 1, 3).reshape(B, S, D) @ wo

    def _B_ref(x, w1, w3, w2):
        gate = torch.einsum("bsd,df->bsf", x, w1)
        up = torch.einsum("bsd,df->bsf", x, w3)
        h = _silu(gate) * up
        out = torch.einsum("bsf,fd->bsd", h, w2)
        return out

    x = A_x
    h = x + _A_ref(_layernorm(x, axis=-1), A_wqkv, A_wo)
    h2 = h + _B_ref(_layernorm(h, axis=-1), B_w1, B_w3, B_w2)
    return h2
```

```python
from gen import Asm, kd, srd, load_ptr, S_LEN, D, WS_QKV, WS_O
import math

H, DH, W = 32, 32, 256
NTILE = 9


def gen_attn(name):
    a = Asm()
    a.raw(f".globl {name}\n.p2align 8\n.type {name},@function")
    a.label(name)
    NWG = (S_LEN // 32) * (H // 4)
    LD = 3 * D * 2
    sQ, sO = 4, 8
    sQ0, sHd, sT, sKB = 12, 13, 14, 15
    a(f"s_cmp_ge_u32 s2, {NWG}")
    a(f"s_cbranch_scc1 L_{name}_end")
    load_ptr(a, sQ, "ws")
    load_ptr(a, sO, "ws")
    a(f"""
    v_lshrrev_b32 v1, 6, v0
    s_nop 0
    v_readfirstlane_b32 s{sT}, v1
    v_and_b32 v0, 63, v0
    s_lshr_b32 s{sQ0}, s2, 3
    s_lshl_b32 s{sQ0}, s{sQ0}, 5           ; q0
    s_and_b32 s{sHd}, s2, 7
    s_lshl_b32 s{sHd}, s{sHd}, 2
    s_nop 2
    s_add_u32 s{sHd}, s{sHd}, s{sT}        ; head
    s_waitcnt lgkmcnt(0)
    """)
    srd(a, sQ, "ws", WS_QKV, S_LEN * 3 * D * 2)
    srd(a, sO, "ws", WS_O, S_LEN * D * 2)
    vL31, vH, vT0, vT1, vT2, vAddr, vVad, vMax, vSum, vM2 = 1, 2, 3, 4, 5, 6, 7, 8, 9, 10
    vQ = 12
    vK = 20
    vO = 28
    vVf = 44
    vS = 64
    a(f"""
    v_and_b32 v{vL31}, 31, v0
    v_lshrrev_b32 v{vH}, 5, v0
    """)
    a(f"""
    s_sub_u32 s{sKB}, s{sQ0}, 256
    v_lshrrev_b32 v{vT0}, 2, v0
    v_add_u32 v{vT0}, s{sKB}, v{vT0}
    v_and_b32 v{vT1}, 3, v0
    v_lshlrev_b32 v{vT1}, 4, v{vT1}
    s_lshl_b32 s20, s{sHd}, 6
    s_add_u32 s20, s20, {2*D*2}
    v_add_u32 v{vT1}, s20, v{vT1}
    s_mov_b32 s20, {LD}
    s_mul_i32 s21, s{sT}, {NTILE*32*64}
    """)
    for i in range(NTILE * 2):
        a(f"s_add_u32 m0, s21, {i*1024}")
        a(f"v_add_u32 v{vT2}, {16*i}, v{vT0}")
        a(f"v_max_i32 v{vT2}, 0, v{vT2}")
        a(f"v_mul_lo_u32 v{vT2}, v{vT2}, s20")
        a(f"v_add_u32 v{vT2}, v{vT2}, v{vT1}")
        a(f"buffer_load_dwordx4 v{vT2}, s[{sQ}:{sQ+3}], 0 offen lds")
    a(f"""
    v_add_u32 v{vT1}, s{sQ0}, v{vL31}
    s_mov_b32 s20, {LD}
    v_mul_lo_u32 v{vT1}, v{vT1}, s20
    s_lshl_b32 s20, s{sHd}, 6
    v_lshl_add_u32 v{vT1}, v{vH}, 4, v{vT1}
    v_add_u32 v{vT1}, s20, v{vT1}
    buffer_load_dwordx4 v[{vQ}:{vQ+3}], v{vT1}, s[{sQ}:{sQ+3}], 0 offen
    buffer_load_dwordx4 v[{vQ+4}:{vQ+7}], v{vT1}, s[{sQ}:{sQ+3}], 0 offen offset:32
    """)
    a(f"""
    v_add_u32 v{vAddr}, s{sKB}, v{vL31}
    s_mov_b32 s23, {LD}
    s_lshl_b32 s20, s{sHd}, 6
    s_add_u32 s20, s20, {D*2}
    v_lshlrev_b32 v{vM2}, 4, v{vH}
    v_add_u32 v{vM2}, s20, v{vM2}
    """)
    for j in range(NTILE):
        sbase = vS + 16 * j
        a(f"v_add_u32 v{vT2}, {32*j}, v{vAddr}")
        a(f"v_max_i32 v{vT2}, 0, v{vT2}")
        a(f"v_mul_lo_u32 v{vT2}, v{vT2}, s23")
        a(f"v_add_u32 v{vT2}, v{vT2}, v{vM2}")
        a(f"buffer_load_dwordx4 v[{vK}:{vK+3}], v{vT2}, s[{sQ}:{sQ+3}], 0 offen")
        a(f"buffer_load_dwordx4 v[{vK+4}:{vK+7}], v{vT2}, s[{sQ}:{sQ+3}], 0 offen offset:32")
        for r in range(16):
            a(f"v_mov_b32 v{sbase+r}, 0")
        a("s_waitcnt vmcnt(0)")
        a(f"v_mfma_f32_32x32x16_bf16 v[{sbase}:{sbase+15}], v[{vK}:{vK+3}], v[{vQ}:{vQ+3}], v[{sbase}:{sbase+15}]")
        a(f"v_mfma_f32_32x32x16_bf16 v[{sbase}:{sbase+15}], v[{vK+4}:{vK+7}], v[{vQ+4}:{vQ+7}], v[{sbase}:{sbase+15}]")
    a("s_nop 15")
    a("s_nop 3")
    NEG = "0xf149f2ca"
    a(f"v_lshlrev_b32 v{vT0}, 2, v{vH}")
    a(f"v_mov_b32 v{vT2}, {NEG}")
    for i in range(4):
        for j2 in range(4):
            r = 4 * i + j2
            a(f"v_add_u32 v{vT1}, {8*i+j2}, v{vT0}")
            a(f"v_cmp_gt_u32 vcc, v{vT1}, v{vL31}")
            a("s_nop 1")
            a(f"v_cndmask_b32 v{vS+r}, v{vT2}, v{vS+r}, vcc")
            a(f"v_cndmask_b32 v{vS+128+r}, v{vS+128+r}, v{vT2}, vcc")
    for j in range(8):
        a(f"s_cmp_ge_u32 s{sQ0}, {256-32*j}")
        a(f"s_cbranch_scc1 L_{name}_ok{j}")
        for r in range(16):
            a(f"v_mov_b32 v{vS+16*j+r}, {NEG}")
        a.label(f"L_{name}_ok{j}")
    a(f"v_max3_f32 v{vMax}, v{vS}, v{vS+1}, v{vS+2}")
    n = 3
    while n < 144:
        if n + 1 < 144:
            a(f"v_max3_f32 v{vMax}, v{vMax}, v{vS+n}, v{vS+n+1}")
            n += 2
        else:
            a(f"v_max_f32 v{vMax}, v{vMax}, v{vS+n}")
            n += 1
    a(f"""
    v_mov_b32 v{vM2}, v{vMax}
    s_nop 1
    v_permlane32_swap_b32 v{vMax}, v{vM2}
    s_nop 1
    v_max_f32 v{vMax}, v{vMax}, v{vM2}
    """)
    c = (DH ** -0.5) * math.log2(math.e)
    a(f"s_mov_b32 s20, {c!r}")
    a(f"v_mul_f32 v{vMax}, s20, v{vMax}")
    a(f"v_sub_f32 v{vMax}, 0, v{vMax}")
    for r in range(144):
        a(f"v_fma_f32 v{vS+r}, v{vS+r}, s20, v{vMax}")
    for r in range(144):
        a(f"v_exp_f32 v{vS+r}, v{vS+r}")
    a("s_nop 0")
    a(f"v_add_f32 v{vSum}, v{vS}, v{vS+1}")
    for r in range(2, 144):
        a(f"v_add_f32 v{vSum}, v{vSum}, v{vS+r}")
    a(f"""
    v_mov_b32 v{vM2}, v{vSum}
    s_nop 1
    v_permlane32_swap_b32 v{vSum}, v{vM2}
    s_nop 1
    v_add_f32 v{vSum}, v{vSum}, v{vM2}
    v_rcp_f32 v{vSum}, v{vSum}
    """)
    for r in range(72):
        a(f"v_cvt_pk_bf16_f32 v{vS+r}, v{vS+2*r}, v{vS+2*r+1}")
    a(f"""
    v_bfe_u32 v{vT0}, v0, 2, 2
    v_lshl_add_u32 v{vT0}, v{vH}, 2, v{vT0}     ; 4h + rr
    v_lshlrev_b32 v{vT0}, 6, v{vT0}
    v_bfe_u32 v{vT1}, v0, 4, 1
    v_lshl_add_u32 v{vT0}, v{vT1}, 5, v{vT0}
    v_and_b32 v{vT1}, 3, v0
    v_lshl_add_u32 v{vT0}, v{vT1}, 3, v{vT0}
    v_add_u32 v{vVad}, s21, v{vT0}
    s_waitcnt vmcnt(0)
    """)
    for r in range(16):
        a(f"v_mov_b32 v{vO+r}, 0")
    for j in range(NTILE):
        for hh in range(2):
            off = (32 * j + 16 * hh) * 64
            f = vVf + 4 * (hh & 1)
            a(f"ds_read_b64_tr_b16 v[{f}:{f+1}], v{vVad} offset:{off}")
            a(f"ds_read_b64_tr_b16 v[{f+2}:{f+3}], v{vVad} offset:{off+8*64}")
            a("s_waitcnt lgkmcnt(0)")
            p = vS + 8 * j + 4 * hh
            a(f"v_mfma_f32_32x32x16_bf16 v[{vO}:{vO+15}], v[{f}:{f+3}], v[{p}:{p+3}], v[{vO}:{vO+15}]")
    a("s_nop 15")
    a("s_nop 3")
    a(f"""
    v_add_u32 v{vT1}, s{sQ0}, v{vL31}
    v_lshlrev_b32 v{vT1}, 11, v{vT1}        ; *2048
    s_lshl_b32 s20, s{sHd}, 6
    v_lshl_add_u32 v{vT1}, v{vH}, 3, v{vT1}
    v_add_u32 v{vT1}, s20, v{vT1}
    """)
    for i in range(4):
        for j2 in range(4):
            a(f"v_mul_f32 v{vO+4*i+j2}, v{vO+4*i+j2}, v{vSum}")
        a(f"v_cvt_pk_bf16_f32 v{vQ+2*i}, v{vO+4*i}, v{vO+4*i+1}")
        a(f"v_cvt_pk_bf16_f32 v{vQ+2*i+1}, v{vO+4*i+2}, v{vO+4*i+3}")
        a(f"buffer_store_dwordx2 v[{vQ+2*i}:{vQ+2*i+1}], v{vT1}, s[{sO}:{sO+3}], 0 offen offset:{16*i}")
    a.label(f"L_{name}_end")
    a("s_endpgm")
    return a.text() + kd(name, 208, 208), (NWG, 256, 4 * NTILE * 32 * 64)
```

```python
B128_GROUPS = [
    [0,1,2,3,12,13,14,15,20,21,22,23,24,25,26,27],
    [4,5,6,7,8,9,10,11,16,17,18,19,28,29,30,31],
    [32,33,34,35,44,45,46,47,52,53,54,55,56,57,58,59],
    [36,37,38,39,40,41,42,43,48,49,50,51,60,61,62,63],
]
B64_GROUPS = [list(range(0,32)), list(range(32,64))]

def cycles(addrs, nbytes, groups):
    tot = 0
    for g in groups:
        banks = {}
        for l in g:
            a = addrs[l]
            for d in range(nbytes//4):
                w = a//4 + d
                b = w % 64
                banks.setdefault(b, set()).add(w)
        tot += max(len(s) for s in banks.values())
    return tot

def cyc_b128(addrs): return cycles(addrs, 16, B128_GROUPS)
def cyc_b64(addrs): return cycles(addrs, 8, B64_GROUPS)
```

```python
import sys, math
from lds_conflict import cyc_b128, cyc_b64

S_LEN, D, F = 2048, 1024, 3584
WS_XN = 0
WS_QKV = 4 << 20
WS_O = 16 << 20
WS_H = 20 << 20
WS_HN = 24 << 20
WS_HACT = 28 << 20
KA = dict(x=0, wqkv=8, wo=16, bx=24, w1=32, w3=40, w2=48, out=56, dbg=64, ws=72)


class Asm:
    def __init__(self):
        self.lines = []

    def __call__(self, s):
        for l in s.strip().split("\n"):
            self.lines.append("    " + l.strip())

    def label(self, l):
        self.lines.append(l + ":")

    def raw(self, s):
        self.lines.append(s)

    def text(self):
        return "\n".join(self.lines) + "\n"


def kd(name, vgpr, accum, sgpr=96):
    return f""".section .rodata,"a"
.p2align 6
.amdhsa_kernel {name}
  .amdhsa_next_free_vgpr {vgpr}
  .amdhsa_next_free_sgpr {sgpr}
  .amdhsa_accum_offset {accum}
  .amdhsa_group_segment_fixed_size 0
  .amdhsa_kernarg_size 80
  .amdhsa_user_sgpr_count 2
  .amdhsa_user_sgpr_kernarg_segment_ptr 1
  .amdhsa_system_sgpr_workgroup_id_x 1
.end_amdhsa_kernel
.text
"""


def srd(a, sd, karg, off, nbytes):
    if off:
        a(f"s_add_u32 s{sd}, s{sd}, {off}")
        a(f"s_addc_u32 s{sd+1}, s{sd+1}, 0")
    a(f"s_mov_b32 s{sd+2}, {nbytes}")
    a(f"s_mov_b32 s{sd+3}, 0x00020000")


def load_ptr(a, sd, karg):
    a(f"s_load_dwordx2 s[{sd}:{sd+1}], s[0:1], {KA[karg]}")


def gen_ln(name, src, src_off, dst_off):
    a = Asm()
    a.raw(f".globl {name}\n.p2align 8\n.type {name},@function")
    a.label(name)
    a(f"""
    s_cmp_ge_u32 s2, {S_LEN//4}
    s_cbranch_scc1 L_{name}_end
    """)
    load_ptr(a, 4, src)
    load_ptr(a, 8, "ws")
    a("s_waitcnt lgkmcnt(0)")
    srd(a, 4, src, src_off, S_LEN * D * 2)
    srd(a, 8, "ws", dst_off, S_LEN * D * 2)
    a(f"""
    v_lshrrev_b32 v1, 6, v0
    v_and_b32 v2, 63, v0
    s_lshl_b32 s3, s2, 2
    v_add_u32 v1, s3, v1            ; row
    v_lshlrev_b32 v1, 11, v1
    v_lshl_add_u32 v1, v2, 4, v1    ; + lane*16
    buffer_load_dwordx4 v[4:7], v1, s[4:7], 0 offen
    buffer_load_dwordx4 v[8:11], v1, s[4:7], 0 offen offset:1024
    s_waitcnt vmcnt(0)
    """)
    for i in range(8):
        a(f"v_lshlrev_b32 v{16+2*i}, 16, v{4+i}")
        a(f"v_and_b32 v{17+2*i}, 0xffff0000, v{4+i}")
    a("v_add_f32 v12, v16, v17")
    for i in range(2, 16):
        a(f"v_add_f32 v12, v12, v{16+i}")

    def wave_sum(r):
        for off in (0x041F, 0x081F, 0x101F, 0x201F, 0x401F):
            a(f"ds_swizzle_b32 v13, v{r} offset:{off:#x}")
            a("s_waitcnt lgkmcnt(0)")
            a(f"v_add_f32 v{r}, v{r}, v13")
        a("s_nop 1")
        a(f"v_readlane_b32 s20, v{r}, 0")
        a(f"v_readlane_b32 s21, v{r}, 32")
        a("s_nop 3")
        a(f"v_mov_b32 v{r}, s20")
        a(f"v_add_f32 v{r}, s21, v{r}")

    wave_sum(12)
    a(f"v_mul_f32 v12, {1.0/D!r}, v12   ; mean")
    for i in range(16):
        a(f"v_sub_f32 v{16+i}, v{16+i}, v12")
    a("v_mul_f32 v14, v16, v16")
    for i in range(1, 16):
        a(f"v_fmac_f32 v14, v{16+i}, v{16+i}")
    wave_sum(14)
    a(f"""
    v_mov_b32 v15, 0x3727c5ac      ; 1e-5
    v_fmac_f32 v15, {1.0/D!r}, v14
    v_rsq_f32 v15, v15
    s_nop 0
    """)
    for i in range(16):
        a(f"v_mul_f32 v{16+i}, v{16+i}, v15")
    for i in range(8):
        a(f"v_cvt_pk_bf16_f32 v{4+i}, v{16+2*i}, v{17+2*i}")
    a(f"""
    buffer_store_dwordx4 v[4:7], v1, s[8:11], 0 offen
    buffer_store_dwordx4 v[8:11], v1, s[8:11], 0 offen offset:1024
    """)
    a.label(f"L_{name}_end")
    a("s_endpgm")
    return a.text() + kd(name, 32, 32), (S_LEN // 4, 256, 0)


def magic_div(RB, maxp):
    M = -(-(1 << 20) // RB)
    for p in range(0, maxp, 16):
        assert (p * M) >> 20 == p // RB
    return M


def pick_swz_w(RBW, BK):
    nch = RBW // 16
    cands = []
    import itertools
    for b1 in (None, 0, 1, 3, 4):
        for b2 in (None, 0, 1, 3, 4):
            for b3 in (None, 0, 1, 3, 4):
                cands.append((b1, b2, b3))

    f = fsw

    best = None
    for c in cands:
        ok = True
        for row in range(BK):
            for ch in range(nch):
                if (ch ^ f(row, c)) >= nch:
                    ok = False
        if not ok:
            continue
        tot = 0
        for kk in range(BK // 32):
            for tn in range(RBW // 32):
                for half in range(2):
                    addrs = []
                    for l in range(64):
                        g, r, cc = l >> 4, (l & 15) >> 2, l & 3
                        row = kk * 32 + 8 * g + r + 4 * half
                        cb = tn * 32 + cc * 8
                        addrs.append(row * RBW + (((cb >> 4) ^ f(row, c)) << 4) + (cb & 15))
                    tot += cyc_b64(addrs)
        if best is None or tot < best[0]:
            best = (tot, c)
    ideal = (BK // 32) * (RBW // 32) * 2 * 2
    return best[1], best[0], ideal


def fsw(row, c):
    v = 0
    if c[0] is not None:
        v |= ((row >> c[0]) & 1) << 1
    if c[1] is not None:
        v |= ((row >> c[1]) & 1) << 2
    if c[2] is not None:
        v |= ((row >> c[2]) & 1) << 3
    return v


def swz_a(row, BK):
    if BK == 64:
        return (row >> 1) & 7
    else:
        return ((row >> 3) & 1) << 1


def emit_swz_a(a, dst, row, BK):
    if BK == 64:
        a(f"v_bfe_u32 v{dst}, v{row}, 1, 3")
    else:
        a(f"v_bfe_u32 v{dst}, v{row}, 3, 1")
        a(f"v_lshlrev_b32 v{dst}, 1, v{dst}")


def check_swz_a(BK):
    RBA = BK * 2
    tot = 0
    for kk in range(BK // 32):
        addrs = []
        for l in range(64):
            row = l & 15
            ch = kk * 4 + (l >> 4)
            addrs.append(row * RBA + ((ch ^ swz_a(row, BK)) << 4))
        tot += cyc_b128(addrs)
    return tot, (BK // 32) * 4


def gen_gemm(name, *, K, lda, A, Ws, ldw, NW_TOT, BM, BNW, BK, NST, WGM, WGN, epi, out, ldo, resid=None,
             xcd_rows=None, RBWP=None):
    NWM = len(Ws)
    NWAVE = WGM * WGN
    RBA, RBW = BK * 2, BNW * 2
    RBWP = RBWP or RBW
    SUB = BK // 32
    TILES_M, TILES_N = S_LEN // BM, NW_TOT // BNW
    NWG = TILES_M * TILES_N
    assert NW_TOT % BNW == 0
    WTM = BM // WGM
    assert BNW % (16 * WGN) == 0 and WTM % 16 == 0
    WTNW = BNW // WGN
    TM, TNW = WTM // 16, WTNW // 16
    TN = TNW * NWM
    A_BYTES = BM * RBA
    W_BYTES = BK * RBWP
    STAGE = A_BYTES + NWM * W_BYTES
    assert A_BYTES % 1024 == 0 and W_BYTES % 1024 == 0
    nA, nW = A_BYTES // 1024, W_BYTES // 1024
    slots = [("A", q) for q in range(-(-nA // NWAVE))]
    for m in range(NWM):
        slots += [(f"W{m}", q) for q in range(-(-nW // NWAVE))]
    DPW = len(slots)
    NT = K // BK
    NU = K // 32
    swc, wcyc, wideal = pick_swz_w(RBWP, BK)
    acyc, aideal = check_swz_a(BK)
    sys.stderr.write(f"{name}: NWG={NWG} TM={TM} TN={TN} STAGE={STAGE} LDS={STAGE*NST} DPW={DPW} "
                     f"swzW={swc} cyc {wcyc}/{wideal} A cyc {acyc}/{aideal}\n")
    assert STAGE * NST <= 160 * 1024

    a = Asm()
    a.raw(f".globl {name}\n.p2align 8\n.type {name},@function")
    a.label(name)
    sA, sW, sO, sR = 4, 8, 16, 20
    sM0, sN0, sWM, sWN, sKA, sKW, sCNT, sT, sLC = 24, 25, 26, 27, 28, 29, 30, 31, 32
    sJ = 36
    assert sJ + DPW <= 100
    a(f"s_cmp_ge_u32 s2, {NWG}")
    a(f"s_cbranch_scc1 L_{name}_end")
    load_ptr(a, sA, A[0])
    for m in range(NWM):
        load_ptr(a, sW + 4 * m, Ws[m])
    load_ptr(a, sO, out[0])
    if resid:
        load_ptr(a, sR, resid[0])
    per = NWG // 8
    xr = xcd_rows or 1
    assert (xr & (xr - 1)) == 0
    Mg = -(-(1 << 16) // TILES_N)
    for vv in range(NWG // xr + 1):
        assert (vv * Mg) >> 16 == vv // TILES_N
    a(f"""
    s_and_b32 s{sT}, s2, 7
    s_mul_i32 s{sT}, s{sT}, {per}
    s_lshr_b32 s{sCNT}, s2, 3
    s_add_u32 s{sT}, s{sT}, s{sCNT}
    s_and_b32 s{sM0}, s{sT}, {xr-1}
    s_lshr_b32 s{sT}, s{sT}, {int(math.log2(xr))}
    s_mul_i32 s{sCNT}, s{sT}, {Mg}
    s_lshr_b32 s{sCNT}, s{sCNT}, 16        ; g
    s_mul_i32 s{sN0}, s{sCNT}, {TILES_N}
    s_sub_u32 s{sN0}, s{sT}, s{sN0}        ; tile_n
    s_mul_i32 s{sCNT}, s{sCNT}, {xr}
    s_add_u32 s{sM0}, s{sM0}, s{sCNT}      ; tile_m
    s_mul_i32 s{sM0}, s{sM0}, {BM}
    s_mul_i32 s{sN0}, s{sN0}, {BNW}
    v_lshrrev_b32 v1, 6, v0
    s_nop 0
    v_readfirstlane_b32 s{sT}, v1
    v_and_b32 v0, 63, v0                   ; lane
    s_nop 3
    s_lshr_b32 s{sWM}, s{sT}, {int(math.log2(WGN))}
    s_and_b32 s{sWN}, s{sT}, {WGN-1}
    s_mov_b32 s{sKA}, 0
    s_mov_b32 s{sKW}, 0
    s_waitcnt lgkmcnt(0)
    """)
    assert (WGN & (WGN - 1)) == 0
    srd(a, sA, A[0], A[1], A[2])
    for m in range(NWM):
        srd(a, sW + 4 * m, Ws[m], 0, K * ldw * 2)
    srd(a, sO, out[0], out[1], out[2])
    if resid:
        srd(a, sR, resid[0], resid[1], resid[2])

    v = 2
    vDMA = v; v += DPW
    vAad = v; v += SUB * NST
    PW = 8 if swc[2] is not None else 4
    nWv = min(PW, TNW)
    vWad = v; v += nWv * NST
    vtmp = v; v += 8
    v = (v + 3) // 4 * 4
    FR = (TM + TN) * 4
    vF = [v, v + FR]; v += 2 * FR
    nv = max(v, vF[0] + 16)
    assert nv <= 256, nv
    nacc = TM * TN * 4
    accum = (nv + 3) // 4 * 4
    assert accum + nacc <= 512

    t0, t1, t2, t3, t4 = vtmp, vtmp + 1, vtmp + 2, vtmp + 3, vtmp + 4
    for q, (kind, qq) in enumerate(slots):
        n = nA if kind == "A" else nW
        RB = RBA if kind == "A" else RBWP
        region = 0 if kind == "A" else A_BYTES + int(kind[1]) * W_BYTES
        M = magic_div(RB, max(A_BYTES, W_BYTES))
        a(f"""
        s_add_u32 s{sCNT}, s{sT}, {qq*NWAVE}
        s_min_u32 s{sCNT}, s{sCNT}, {n-1}
        s_lshl_b32 s{sCNT}, s{sCNT}, 10           ; j*1024
        s_add_u32 s{sJ+q}, s{sCNT}, {region}
        v_lshlrev_b32 v{t0}, 4, v0
        v_add_u32 v{t0}, s{sCNT}, v{t0}           ; p
        s_mov_b32 s{sCNT}, {M}
        v_mul_lo_u32 v{t1}, v{t0}, s{sCNT}
        v_lshrrev_b32 v{t1}, 20, v{t1}            ; row
        s_mov_b32 s{sCNT}, {RB}
        v_mul_lo_u32 v{t2}, v{t1}, s{sCNT}
        v_sub_u32 v{t2}, v{t0}, v{t2}             ; p%RB
        v_lshrrev_b32 v{t2}, 4, v{t2}             ; cpos
        """)
        if kind == "A":
            emit_swz_a(a, t3, t1, BK)
            a(f"""
            v_xor_b32 v{t2}, v{t2}, v{t3}
            v_add_u32 v{t1}, s{sM0}, v{t1}
            s_mov_b32 s{sCNT}, {lda*2}
            v_mul_lo_u32 v{t1}, v{t1}, s{sCNT}
            v_lshl_add_u32 v{vDMA+q}, v{t2}, 4, v{t1}
            """)
        else:
            a(f"v_mov_b32 v{t3}, 0")
            if swc[0] is not None:
                a(f"v_bfe_u32 v{t4}, v{t1}, {swc[0]}, 1")
                a(f"v_lshl_or_b32 v{t3}, v{t4}, 1, v{t3}")
            if swc[1] is not None:
                a(f"v_bfe_u32 v{t4}, v{t1}, {swc[1]}, 1")
                a(f"v_lshl_or_b32 v{t3}, v{t4}, 2, v{t3}")
            if swc[2] is not None:
                a(f"v_bfe_u32 v{t4}, v{t1}, {swc[2]}, 1")
                a(f"v_lshl_or_b32 v{t3}, v{t4}, 3, v{t3}")
            a(f"""
            v_xor_b32 v{t2}, v{t2}, v{t3}
            v_min_u32 v{t2}, {RBW//16-1}, v{t2}
            s_mov_b32 s{sCNT}, {ldw*2}
            v_mul_lo_u32 v{t1}, v{t1}, s{sCNT}
            v_lshl_add_u32 v{t1}, v{t2}, 4, v{t1}
            s_lshl_b32 s{sCNT}, s{sN0}, 1
            v_add_u32 v{vDMA+q}, s{sCNT}, v{t1}
            """)

    def emit_dma(stage_buf):
        for q, (kind, qq) in enumerate(slots):
            sr = sA if kind == "A" else sW + 4 * int(kind[1])
            so = sKA if kind == "A" else sKW
            a(f"s_add_u32 m0, s{sJ+q}, {stage_buf*STAGE}")
            a(f"buffer_load_dwordx4 v{vDMA+q}, s[{sr}:{sr+3}], s{so} offen lds")
        a(f"s_add_u32 s{sKA}, s{sKA}, {BK*2}")
        a(f"s_add_u32 s{sKW}, s{sKW}, {BK*ldw*2}")

    a(f"""
    v_and_b32 v{t0}, 15, v0
    v_lshrrev_b32 v{t1}, 4, v0
    s_mul_i32 s{sCNT}, s{sWM}, {WTM}
    v_add_u32 v{t2}, s{sCNT}, v{t0}         ; row
    """)
    emit_swz_a(a, t3, t0, BK)
    for kk in range(SUB):
        a(f"""
        v_add_u32 v{t4}, {kk*4}, v{t1}
        v_xor_b32 v{t4}, v{t4}, v{t3}
        v_lshlrev_b32 v{t4}, 4, v{t4}
        v_mul_u32_u24 v{vAad+kk*NST}, {RBA}, v{t2}
        v_add_u32 v{vAad+kk*NST}, v{vAad+kk*NST}, v{t4}
        """)
        for st in range(1, NST):
            a(f"v_add_u32 v{vAad+kk*NST+st}, {st*STAGE}, v{vAad+kk*NST}")
    a(f"""
    v_bfe_u32 v{t0}, v0, 2, 2              ; r
    v_lshl_add_u32 v{t0}, v{t1}, 3, v{t0}  ; row = 8g + r
    v_and_b32 v{t2}, 3, v0                 ; c
    v_mov_b32 v{t3}, 0
    """)
    if swc[0] is not None:
        a(f"v_bfe_u32 v{t4}, v{t0}, {swc[0]}, 1")
        a(f"v_lshl_or_b32 v{t3}, v{t4}, 1, v{t3}")
    if swc[1] is not None:
        a(f"v_bfe_u32 v{t4}, v{t0}, {swc[1]}, 1")
        a(f"v_lshl_or_b32 v{t3}, v{t4}, 2, v{t3}")
    if swc[2] is not None:
        a(f"v_bfe_u32 v{t4}, v{t0}, {swc[2]}, 1")
        a(f"v_lshl_or_b32 v{t3}, v{t4}, 3, v{t3}")
    for row in range(BK):
        assert fsw(row, swc) == fsw((row % 32) & ~4, swc), "swizzle depends on row bit2/5"
    for i in range(nWv):
        a(f"""
        s_mul_i32 s{sCNT}, s{sWN}, {WTNW*2}
        s_add_u32 s{sCNT}, s{sCNT}, {i*32}
        v_lshlrev_b32 v{t4}, 3, v{t2}
        v_add_u32 v{t4}, s{sCNT}, v{t4}         ; cb
        v_lshrrev_b32 v{t1}, 4, v{t4}
        v_xor_b32 v{t1}, v{t1}, v{t3}
        v_and_b32 v{t4}, 15, v{t4}
        v_lshl_add_u32 v{t4}, v{t1}, 4, v{t4}
        v_mul_u32_u24 v{vWad+i*NST}, {RBWP}, v{t0}
        v_add_u32 v{vWad+i*NST}, v{vWad+i*NST}, v{t4}
        v_add_u32 v{vWad+i*NST}, {A_BYTES}, v{vWad+i*NST}
        """)
        for st in range(1, NST):
            a(f"v_add_u32 v{vWad+i*NST+st}, {st*STAGE}, v{vWad+i*NST}")

    def acc(tm, tn):
        i = (tm * TN + tn) * 4
        return f"a[{i}:{i+3}]"

    def emit_reads(u, fset):
        st = (u // SUB) % NST
        kk = u % SUB
        base = vF[fset]
        lst = []
        for tm in range(TM):
            lst.append(f"ds_read_b128 v[{base+tm*4}:{base+tm*4+3}], v{vAad+kk*NST+st} offset:{tm*16*RBA}")
        for m in range(NWM):
            for tn in range(TNW):
                i = tn % PW
                off = m * W_BYTES + kk * 32 * RBWP + (tn - i) * 32
                r = base + (TM + m * TNW + tn) * 4
                lst.append(f"ds_read_b64_tr_b16 v[{r}:{r+1}], v{vWad+i*NST+st} offset:{off}")
                lst.append(f"ds_read_b64_tr_b16 v[{r+2}:{r+3}], v{vWad+i*NST+st} offset:{off+4*RBWP}")
        return lst

    def emit_mfmas(fset):
        base = vF[fset]
        lst = []
        for tn in range(TN):
            for tm in range(TM):
                lst.append(f"v_mfma_f32_16x16x32_bf16 {acc(tm,tn)}, v[{base+(TM+tn)*4}:{base+(TM+tn)*4+3}], "
                           f"v[{base+tm*4}:{base+tm*4+3}], {acc(tm,tn)}")
        return lst

    npre = min(NST, NT)
    for st in range(npre):
        emit_dma(st)
    for i in range(nacc):
        a(f"v_accvgpr_write_b32 a{i}, 0")
    a(f"s_waitcnt vmcnt({(npre-1)*DPW})")
    a("s_barrier")
    for l in emit_reads(0, 0):
        a(l)

    def substep(u, issued):
        fset = u % 2
        mf = emit_mfmas(fset)
        nxt = u + 1
        a("s_waitcnt lgkmcnt(0)")
        if nxt >= NU:
            for l in mf:
                a(l)
            return
        newstage = (nxt % SUB == 0)
        nb = 2 if newstage else 0
        for l in mf[:nb]:
            a(l)
        if newstage:
            t = u // SUB
            a(f"s_waitcnt vmcnt({(issued - (t + 1)) * DPW})")
            a("s_barrier")
            if t + NST <= NT - 1:
                emit_dma((t + NST) % NST)
        rd = emit_reads(nxt, 1 - fset)
        i = 0
        for l in mf[nb:]:
            if i < len(rd):
                a(rd[i]); i += 1
            a(l)
        while i < len(rd):
            a(rd[i]); i += 1

    P = SUB * NST if (SUB * NST) % 2 == 0 else 2 * SUB * NST
    nloop = 0
    if NU > 64:
        nloop = ((NT - NST) * SUB) // P
    u = 0
    if nloop >= 2:
        a(f"s_mov_b32 s{sLC}, {nloop}")
        a.label(f"L_{name}_loop")
        for uu in range(P):
            substep(uu, npre - 1 + uu // SUB)
        a(f"s_sub_u32 s{sLC}, s{sLC}, 1")
        a(f"s_cmp_lg_u32 s{sLC}, 0")
        a(f"s_cbranch_scc1 L_{name}_loop")
        u = nloop * P
    while u < NU:
        substep(u, min(npre - 1 + u // SUB, NT - 1))
        u += 1

    a("s_nop 7")
    a("s_nop 7")
    vo = vtmp + 5
    a(f"""
    v_and_b32 v{t0}, 15, v0
    v_lshrrev_b32 v{t1}, 4, v0
    s_mul_i32 s{sCNT}, s{sWM}, {WTM}
    s_add_u32 s{sCNT}, s{sCNT}, s{sM0}
    v_add_u32 v{t0}, s{sCNT}, v{t0}          ; m
    s_mov_b32 s{sCNT}, {ldo*2}
    v_mul_lo_u32 v{t0}, v{t0}, s{sCNT}
    s_mul_i32 s{sCNT}, s{sWN}, {WTNW}
    s_add_u32 s{sCNT}, s{sCNT}, s{sN0}
    s_lshl_b32 s{sCNT}, s{sCNT}, 1
    v_lshl_add_u32 v{t0}, v{t1}, 3, v{t0}
    v_add_u32 v{vo}, s{sCNT}, v{t0}
    """)
    e = vF[0]
    for tm in range(TM):
        if epi == "resid":
            for tn in range(TN):
                a(f"buffer_load_dwordx2 v[{vF[1]+tn*2}:{vF[1]+tn*2+1}], v{vo}, s[{sR}:{sR+3}], 0 offen offset:{tn*32}")
            a("s_waitcnt vmcnt(0)")
        ntile = TNW if epi == "swiglu" else TN
        for tn in range(ntile):
            i0 = (tm * TN + tn) * 4
            for r in range(4):
                a(f"v_accvgpr_read_b32 v{e+r}, a{i0+r}")
            if epi == "swiglu":
                i1 = (tm * TN + tn + TNW) * 4
                for r in range(4):
                    a(f"v_accvgpr_read_b32 v{e+4+r}, a{i1+r}")
                for r in range(4):
                    a(f"v_mul_f32 v{e+8+r}, 0xbfb8aa3b, v{e+r}")
                for r in range(4):
                    a(f"v_exp_f32 v{e+8+r}, v{e+8+r}")
                a("s_nop 0")
                for r in range(4):
                    a(f"v_add_f32 v{e+8+r}, 1.0, v{e+8+r}")
                for r in range(4):
                    a(f"v_rcp_f32 v{e+8+r}, v{e+8+r}")
                a("s_nop 0")
                for r in range(4):
                    a(f"v_mul_f32 v{e+r}, v{e+r}, v{e+8+r}")
                for r in range(4):
                    a(f"v_mul_f32 v{e+r}, v{e+r}, v{e+4+r}")
            if epi == "resid":
                rr = vF[1] + tn * 2
                a(f"v_lshlrev_b32 v{e+4}, 16, v{rr}")
                a(f"v_and_b32 v{e+5}, 0xffff0000, v{rr}")
                a(f"v_lshlrev_b32 v{e+6}, 16, v{rr+1}")
                a(f"v_and_b32 v{e+7}, 0xffff0000, v{rr+1}")
                for r in range(4):
                    a(f"v_add_f32 v{e+r}, v{e+r}, v{e+4+r}")
            a(f"v_cvt_pk_bf16_f32 v{e+12}, v{e}, v{e+1}")
            a(f"v_cvt_pk_bf16_f32 v{e+13}, v{e+2}, v{e+3}")
            a(f"buffer_store_dwordx2 v[{e+12}:{e+13}], v{vo}, s[{sO}:{sO+3}], 0 offen offset:{tn*32}")
            a("s_nop 1")
        if tm != TM - 1:
            a(f"v_add_u32 v{vo}, {16*ldo*2}, v{vo}")
    a.label(f"L_{name}_end")
    a("s_endpgm")
    return a.text() + kd(name, accum + nacc, accum, 102), (NWG, NWAVE * 64, STAGE * NST)


def build(which=None):
    kernels = []
    kernels.append(("ln1_kernel",) + gen_ln("ln1_kernel", "x", 0, WS_XN))
    kernels.append(("qkv_kernel",) + gen_gemm(
        "qkv_kernel", K=D, lda=D, A=("ws", WS_XN, S_LEN * D * 2), Ws=["wqkv"], ldw=3 * D, NW_TOT=3 * D,
        BM=128, BNW=192, BK=64, NST=3, WGM=2, WGN=2, epi="store", out=("ws", WS_QKV, S_LEN * 3 * D * 2), ldo=3 * D,
        xcd_rows=2))
    from attn import gen_attn
    kernels.append(("attn_kernel",) + gen_attn("attn_kernel"))
    kernels.append(("wo_kernel",) + gen_gemm(
        "wo_kernel", K=D, lda=D, A=("ws", WS_O, S_LEN * D * 2), Ws=["wo"], ldw=D, NW_TOT=D,
        BM=128, BNW=64, BK=64, NST=4, WGM=4, WGN=1, epi="resid", out=("ws", WS_H, S_LEN * D * 2), ldo=D,
        resid=("x", 0, S_LEN * D * 2), xcd_rows=2))
    kernels.append(("ln2_kernel",) + gen_ln("ln2_kernel", "ws", WS_H, WS_HN))
    kernels.append(("gu_kernel",) + gen_gemm(
        "gu_kernel", K=D, lda=D, A=("ws", WS_HN, S_LEN * D * 2), Ws=["w1", "w3"], ldw=F, NW_TOT=F,
        BM=256, BNW=112, BK=32, NST=4, WGM=4, WGN=1, epi="swiglu", out=("ws", WS_HACT, S_LEN * F * 2), ldo=F,
        xcd_rows=1, RBWP=256))
    kernels.append(("dn_kernel",) + gen_gemm(
        "dn_kernel", K=F, lda=F, A=("ws", WS_HACT, S_LEN * F * 2), Ws=["w2"], ldw=D, NW_TOT=D,
        BM=128, BNW=64, BK=64, NST=4, WGM=4, WGN=1, epi="resid", out=("out", 0, S_LEN * D * 2), ldo=D,
        resid=("ws", WS_H, S_LEN * D * 2), xcd_rows=2))
    hdr = "; generated by gen/gen.py\n"
    for name, txt, (g, b, lds) in kernels:
        hdr += f"; @launch kernel={name} grid=({g},1,1) block=({b},1,1) lds={lds}\n"
    body = '.amdgcn_target "amdgcn-amd-amdhsa--gfx950"\n.text\n'
    for name, txt, _ in kernels:
        body += txt
    return hdr + body


if __name__ == "__main__":
    out = sys.argv[1] if len(sys.argv) > 1 else "sequential_preLN__sliding_block__glu_gated_swiglu__prompt.s"
    open(out, "w").write(build())
```

```python
from gen import Asm, kd, srd, load_ptr, S_LEN, D, WS_QKV, WS_O
import math

H, DH, W = 32, 32, 256
NTILE = 9


def gen_attn(name):
    a = Asm()
    a.raw(f".globl {name}\n.p2align 8\n.type {name},@function")
    a.label(name)
    NWG = (S_LEN // 32) * (H // 4)
    LD = 3 * D * 2
    sQ, sO = 4, 8
    sQ0, sHd, sT, sKB = 12, 13, 14, 15
    a(f"s_cmp_ge_u32 s2, {NWG}")
    a(f"s_cbranch_scc1 L_{name}_end")
    load_ptr(a, sQ, "ws")
    load_ptr(a, sO, "ws")
    a(f"""
    v_lshrrev_b32 v1, 6, v0
    s_nop 0
    v_readfirstlane_b32 s{sT}, v1
    v_and_b32 v0, 63, v0
    s_lshr_b32 s{sQ0}, s2, 3
    s_lshl_b32 s{sQ0}, s{sQ0}, 5           ; q0
    s_and_b32 s{sHd}, s2, 7
    s_lshl_b32 s{sHd}, s{sHd}, 2
    s_nop 2
    s_add_u32 s{sHd}, s{sHd}, s{sT}        ; head
    s_waitcnt lgkmcnt(0)
    """)
    srd(a, sQ, "ws", WS_QKV, S_LEN * 3 * D * 2)
    srd(a, sO, "ws", WS_O, S_LEN * D * 2)
    vL31, vH, vT0, vT1, vT2, vAddr, vVad, vMax, vSum, vM2 = 1, 2, 3, 4, 5, 6, 7, 8, 9, 10
    vQ = 12
    vK = 20
    vO = 28
    vVf = 44
    vS = 64
    a(f"""
    v_and_b32 v{vL31}, 31, v0
    v_lshrrev_b32 v{vH}, 5, v0
    """)
    a(f"s_sub_u32 s{sKB}, s{sQ0}, 256")
    a(f"""
    v_add_u32 v{vT1}, s{sQ0}, v{vL31}
    s_mov_b32 s20, {LD}
    v_mul_lo_u32 v{vT1}, v{vT1}, s20
    s_lshl_b32 s20, s{sHd}, 6
    v_lshl_add_u32 v{vT1}, v{vH}, 4, v{vT1}
    v_add_u32 v{vT1}, s20, v{vT1}
    buffer_load_dwordx4 v[{vQ}:{vQ+3}], v{vT1}, s[{sQ}:{sQ+3}], 0 offen
    buffer_load_dwordx4 v[{vQ+4}:{vQ+7}], v{vT1}, s[{sQ}:{sQ+3}], 0 offen offset:32
    """)
    a(f"""
    v_add_u32 v{vAddr}, s{sKB}, v{vL31}
    s_mov_b32 s23, {LD}
    s_lshl_b32 s20, s{sHd}, 6
    s_add_u32 s20, s20, {D*2}
    v_lshlrev_b32 v{vM2}, 4, v{vH}
    v_add_u32 v{vM2}, s20, v{vM2}
    """)
    kr = lambda j: (vS + 16 * (j + 1)) if j < 8 else vK
    for j in range(NTILE):
        a(f"v_add_u32 v{vT2}, {32*j}, v{vAddr}")
        a(f"v_max_i32 v{vT2}, 0, v{vT2}")
        a(f"v_mul_lo_u32 v{vT2}, v{vT2}, s23")
        a(f"v_add_u32 v{vT2}, v{vT2}, v{vM2}")
        a(f"buffer_load_dwordx4 v[{kr(j)}:{kr(j)+3}], v{vT2}, s[{sQ}:{sQ+3}], 0 offen")
        a(f"buffer_load_dwordx4 v[{kr(j)+4}:{kr(j)+7}], v{vT2}, s[{sQ}:{sQ+3}], 0 offen offset:32")
    a(f"""
    v_lshrrev_b32 v{vT0}, 2, v0
    v_add_u32 v{vT0}, s{sKB}, v{vT0}
    v_and_b32 v{vT1}, 3, v0
    v_lshlrev_b32 v{vT1}, 4, v{vT1}
    s_lshl_b32 s20, s{sHd}, 6
    s_add_u32 s20, s20, {2*D*2}
    v_add_u32 v{vT1}, s20, v{vT1}
    s_mov_b32 s20, {LD}
    s_mul_i32 s21, s{sT}, {NTILE*32*64}
    """)
    for i in range(NTILE * 2):
        a(f"s_add_u32 m0, s21, {i*1024}")
        a(f"v_add_u32 v{vT2}, {16*i}, v{vT0}")
        a(f"v_max_i32 v{vT2}, 0, v{vT2}")
        a(f"v_mul_lo_u32 v{vT2}, v{vT2}, s20")
        a(f"v_add_u32 v{vT2}, v{vT2}, v{vT1}")
        a(f"buffer_load_dwordx4 v{vT2}, s[{sQ}:{sQ+3}], 0 offen lds")
    for j in range(NTILE):
        sbase = vS + 16 * j
        for r in range(16):
            a(f"v_mov_b32 v{sbase+r}, 0")
        a(f"s_waitcnt vmcnt({18 + 2*(NTILE-1-j)})")
        a(f"v_mfma_f32_32x32x16_bf16 v[{sbase}:{sbase+15}], v[{kr(j)}:{kr(j)+3}], v[{vQ}:{vQ+3}], v[{sbase}:{sbase+15}]")
        a(f"v_mfma_f32_32x32x16_bf16 v[{sbase}:{sbase+15}], v[{kr(j)+4}:{kr(j)+7}], v[{vQ+4}:{vQ+7}], v[{sbase}:{sbase+15}]")
    a("s_nop 15")
    a("s_nop 3")
    NEG = "0xf149f2ca"
    a(f"v_lshlrev_b32 v{vT0}, 2, v{vH}")
    a(f"v_mov_b32 v{vT2}, {NEG}")
    for i in range(4):
        for j2 in range(4):
            r = 4 * i + j2
            a(f"v_add_u32 v{vT1}, {8*i+j2}, v{vT0}")
            a(f"v_cmp_gt_u32 vcc, v{vT1}, v{vL31}")
            a("s_nop 1")
            a(f"v_cndmask_b32 v{vS+r}, v{vT2}, v{vS+r}, vcc")
            a(f"v_cndmask_b32 v{vS+128+r}, v{vS+128+r}, v{vT2}, vcc")
    for j in range(8):
        a(f"s_cmp_ge_u32 s{sQ0}, {256-32*j}")
        a(f"s_cbranch_scc1 L_{name}_ok{j}")
        for r in range(16):
            a(f"v_mov_b32 v{vS+16*j+r}, {NEG}")
        a.label(f"L_{name}_ok{j}")
    a(f"v_max3_f32 v{vMax}, v{vS}, v{vS+1}, v{vS+2}")
    n = 3
    while n < 144:
        if n + 1 < 144:
            a(f"v_max3_f32 v{vMax}, v{vMax}, v{vS+n}, v{vS+n+1}")
            n += 2
        else:
            a(f"v_max_f32 v{vMax}, v{vMax}, v{vS+n}")
            n += 1
    a(f"""
    v_mov_b32 v{vM2}, v{vMax}
    s_nop 1
    v_permlane32_swap_b32 v{vMax}, v{vM2}
    s_nop 1
    v_max_f32 v{vMax}, v{vMax}, v{vM2}
    """)
    c = (DH ** -0.5) * math.log2(math.e)
    a(f"s_mov_b32 s20, {c!r}")
    a(f"v_mul_f32 v{vMax}, s20, v{vMax}")
    a(f"v_sub_f32 v{vMax}, 0, v{vMax}")
    for r in range(144):
        a(f"v_fma_f32 v{vS+r}, v{vS+r}, s20, v{vMax}")
    for r in range(144):
        a(f"v_exp_f32 v{vS+r}, v{vS+r}")
    a("s_nop 0")
    a(f"v_add_f32 v{vSum}, v{vS}, v{vS+1}")
    for r in range(2, 144):
        a(f"v_add_f32 v{vSum}, v{vSum}, v{vS+r}")
    a(f"""
    v_mov_b32 v{vM2}, v{vSum}
    s_nop 1
    v_permlane32_swap_b32 v{vSum}, v{vM2}
    s_nop 1
    v_add_f32 v{vSum}, v{vSum}, v{vM2}
    v_rcp_f32 v{vSum}, v{vSum}
    """)
    for r in range(72):
        a(f"v_cvt_pk_bf16_f32 v{vS+r}, v{vS+2*r}, v{vS+2*r+1}")
    a(f"""
    v_bfe_u32 v{vT0}, v0, 2, 2
    v_lshl_add_u32 v{vT0}, v{vH}, 2, v{vT0}     ; 4h + rr
    v_lshlrev_b32 v{vT0}, 6, v{vT0}
    v_bfe_u32 v{vT1}, v0, 4, 1
    v_lshl_add_u32 v{vT0}, v{vT1}, 5, v{vT0}
    v_and_b32 v{vT1}, 3, v0
    v_lshl_add_u32 v{vT0}, v{vT1}, 3, v{vT0}
    v_add_u32 v{vVad}, s21, v{vT0}
    s_waitcnt vmcnt(0)
    """)
    for r in range(16):
        a(f"v_mov_b32 v{vO+r}, 0")
    NPV = NTILE * 2
    def rd(i):
        off = (16 * i) * 64
        f = vVr + 4 * (i % 4)
        a(f"ds_read_b64_tr_b16 v[{f}:{f+1}], v{vVad} offset:{off}")
        a(f"ds_read_b64_tr_b16 v[{f+2}:{f+3}], v{vVad} offset:{off+8*64}")
    vVr = 136 + 64
    vVr = vS + 80
    for i in range(3):
        rd(i)
    for i in range(NPV):
        if i + 3 < NPV:
            rd(i + 3)
        nout = min(3, NPV - 1 - i)
        a(f"s_waitcnt lgkmcnt({2*nout})")
        f = vVr + 4 * (i % 4)
        p = vS + 4 * i
        a(f"v_mfma_f32_32x32x16_bf16 v[{vO}:{vO+15}], v[{f}:{f+3}], v[{p}:{p+3}], v[{vO}:{vO+15}]")
    a("s_nop 15")
    a("s_nop 3")
    a(f"""
    v_add_u32 v{vT1}, s{sQ0}, v{vL31}
    v_lshlrev_b32 v{vT1}, 11, v{vT1}        ; *2048
    s_lshl_b32 s20, s{sHd}, 6
    v_lshl_add_u32 v{vT1}, v{vH}, 3, v{vT1}
    v_add_u32 v{vT1}, s20, v{vT1}
    """)
    for i in range(4):
        for j2 in range(4):
            a(f"v_mul_f32 v{vO+4*i+j2}, v{vO+4*i+j2}, v{vSum}")
        a(f"v_cvt_pk_bf16_f32 v{vQ+2*i}, v{vO+4*i}, v{vO+4*i+1}")
        a(f"v_cvt_pk_bf16_f32 v{vQ+2*i+1}, v{vO+4*i+2}, v{vO+4*i+3}")
        a(f"buffer_store_dwordx2 v[{vQ+2*i}:{vQ+2*i+1}], v{vT1}, s[{sO}:{sO+3}], 0 offen offset:{16*i}")
    a.label(f"L_{name}_end")
    a("s_endpgm")
    return a.text() + kd(name, 208, 208), (NWG, 256, 4 * NTILE * 32 * 64)
```

```python
import sys, math, os
FLAGS = set(os.environ.get('GFLAGS', '').split(','))
from lds_conflict import cyc_b128, cyc_b64

S_LEN, D, F = 2048, 1024, 3584
WS_XN = 0
WS_QKV = 4 << 20
WS_O = 16 << 20
WS_H = 20 << 20
WS_HN = 24 << 20
WS_HACT = 28 << 20
WS_PART = 48 << 20
WS_FLAG = 80 << 20
KA = dict(x=0, wqkv=8, wo=16, bx=24, w1=32, w3=40, w2=48, out=56, dbg=64, ws=72)


class Asm:
    def __init__(self):
        self.lines = []

    def __call__(self, s):
        for l in s.strip().split("\n"):
            self.lines.append("    " + l.strip())

    def label(self, l):
        self.lines.append(l + ":")

    def raw(self, s):
        self.lines.append(s)

    def text(self):
        return "\n".join(self.lines) + "\n"


def kd(name, vgpr, accum, sgpr=96):
    return f""".section .rodata,"a"
.p2align 6
.amdhsa_kernel {name}
  .amdhsa_next_free_vgpr {vgpr}
  .amdhsa_next_free_sgpr {sgpr}
  .amdhsa_accum_offset {accum}
  .amdhsa_group_segment_fixed_size 0
  .amdhsa_kernarg_size 80
  .amdhsa_user_sgpr_count 2
  .amdhsa_user_sgpr_kernarg_segment_ptr 1
  .amdhsa_system_sgpr_workgroup_id_x 1
.end_amdhsa_kernel
.text
"""


def srd(a, sd, karg, off, nbytes):
    if off:
        a(f"s_add_u32 s{sd}, s{sd}, {off}")
        a(f"s_addc_u32 s{sd+1}, s{sd+1}, 0")
    a(f"s_mov_b32 s{sd+2}, {nbytes}")
    a(f"s_mov_b32 s{sd+3}, 0x00020000")


def load_ptr(a, sd, karg):
    a(f"s_load_dwordx2 s[{sd}:{sd+1}], s[0:1], {KA[karg]}")


def gen_ln(name, src, src_off, dst_off, zero_flags=False):
    a = Asm()
    a.raw(f".globl {name}\n.p2align 8\n.type {name},@function")
    a.label(name)
    a(f"""
    s_cmp_ge_u32 s2, {S_LEN//4}
    s_cbranch_scc1 L_{name}_end
    """)
    load_ptr(a, 4, src)
    load_ptr(a, 8, "ws")
    a("s_waitcnt lgkmcnt(0)")
    srd(a, 4, src, src_off, S_LEN * D * 2)
    srd(a, 8, "ws", dst_off, S_LEN * D * 2)
    if zero_flags:
        load_ptr(a, 12, "ws")
        a("s_waitcnt lgkmcnt(0)")
        srd(a, 12, "ws", WS_FLAG, 8192)
        a(f"""
        s_cmp_lg_u32 s2, 0
        s_cbranch_scc1 L_{name}_nz
        v_lshlrev_b32 v1, 5, v0
        v_mov_b32 v4, 0
        v_mov_b32 v5, 0
        v_mov_b32 v6, 0
        v_mov_b32 v7, 0
        buffer_store_dwordx4 v[4:7], v1, s[12:15], 0 offen
        buffer_store_dwordx4 v[4:7], v1, s[12:15], 0 offen offset:16
        """)
        a.label(f"L_{name}_nz")
    a(f"""
    v_lshrrev_b32 v1, 6, v0
    v_and_b32 v2, 63, v0
    s_lshl_b32 s3, s2, 2
    v_add_u32 v1, s3, v1            ; row
    v_lshlrev_b32 v1, 11, v1
    v_lshl_add_u32 v1, v2, 4, v1    ; + lane*16
    buffer_load_dwordx4 v[4:7], v1, s[4:7], 0 offen
    buffer_load_dwordx4 v[8:11], v1, s[4:7], 0 offen offset:1024
    s_waitcnt vmcnt(0)
    """)
    for i in range(8):
        a(f"v_lshlrev_b32 v{16+2*i}, 16, v{4+i}")
        a(f"v_and_b32 v{17+2*i}, 0xffff0000, v{4+i}")
    a("v_add_f32 v12, v16, v17")
    for i in range(2, 16):
        a(f"v_add_f32 v12, v12, v{16+i}")

    def wave_sum(r):
        for off in (0x041F, 0x081F, 0x101F, 0x201F, 0x401F):
            a(f"ds_swizzle_b32 v13, v{r} offset:{off:#x}")
            a("s_waitcnt lgkmcnt(0)")
            a(f"v_add_f32 v{r}, v{r}, v13")
        a("s_nop 1")
        a(f"v_readlane_b32 s20, v{r}, 0")
        a(f"v_readlane_b32 s21, v{r}, 32")
        a("s_nop 3")
        a(f"v_mov_b32 v{r}, s20")
        a(f"v_add_f32 v{r}, s21, v{r}")

    wave_sum(12)
    a(f"v_mul_f32 v12, {1.0/D!r}, v12   ; mean")
    for i in range(16):
        a(f"v_sub_f32 v{16+i}, v{16+i}, v12")
    a("v_mul_f32 v14, v16, v16")
    for i in range(1, 16):
        a(f"v_fmac_f32 v14, v{16+i}, v{16+i}")
    wave_sum(14)
    a(f"""
    v_mov_b32 v15, 0x3727c5ac      ; 1e-5
    v_fmac_f32 v15, {1.0/D!r}, v14
    v_rsq_f32 v15, v15
    s_nop 0
    """)
    for i in range(16):
        a(f"v_mul_f32 v{16+i}, v{16+i}, v15")
    for i in range(8):
        a(f"v_cvt_pk_bf16_f32 v{4+i}, v{16+2*i}, v{17+2*i}")
    a(f"""
    buffer_store_dwordx4 v[4:7], v1, s[8:11], 0 offen
    buffer_store_dwordx4 v[8:11], v1, s[8:11], 0 offen offset:1024
    """)
    a.label(f"L_{name}_end")
    a("s_endpgm")
    return a.text() + kd(name, 32, 32), (S_LEN // 4, 256, 0)


def magic_div(RB, maxp):
    M = -(-(1 << 20) // RB)
    for p in range(0, maxp, 16):
        assert (p * M) >> 20 == p // RB
    return M


def pick_swz_w(RBW, BK):
    nch = RBW // 16
    cands = []
    import itertools
    for b1 in (None, 0, 1, 3, 4):
        for b2 in (None, 0, 1, 3, 4):
            for b3 in (None, 0, 1, 3, 4):
                cands.append((b1, b2, b3))

    f = fsw

    best = None
    for c in cands:
        ok = True
        for row in range(BK):
            for ch in range(nch):
                if (ch ^ f(row, c)) >= nch:
                    ok = False
        if not ok:
            continue
        tot = 0
        for kk in range(BK // 32):
            for tn in range(RBW // 32):
                for half in range(2):
                    addrs = []
                    for l in range(64):
                        g, r, cc = l >> 4, (l & 15) >> 2, l & 3
                        row = kk * 32 + 8 * g + r + 4 * half
                        cb = tn * 32 + cc * 8
                        addrs.append(row * RBW + (((cb >> 4) ^ f(row, c)) << 4) + (cb & 15))
                    tot += cyc_b64(addrs)
        if best is None or tot < best[0]:
            best = (tot, c)
    ideal = (BK // 32) * (RBW // 32) * 2 * 2
    return best[1], best[0], ideal


def fsw(row, c):
    v = 0
    if c[0] is not None:
        v |= ((row >> c[0]) & 1) << 1
    if c[1] is not None:
        v |= ((row >> c[1]) & 1) << 2
    if c[2] is not None:
        v |= ((row >> c[2]) & 1) << 3
    return v


def swz_a(row, BK):
    if BK == 64:
        return (row >> 1) & 7
    else:
        return ((row >> 3) & 1) << 1


def emit_swz_a(a, dst, row, BK):
    if BK == 64:
        a(f"v_bfe_u32 v{dst}, v{row}, 1, 3")
    else:
        a(f"v_bfe_u32 v{dst}, v{row}, 3, 1")
        a(f"v_lshlrev_b32 v{dst}, 1, v{dst}")


def check_swz_a(BK):
    RBA = BK * 2
    tot = 0
    for kk in range(BK // 32):
        addrs = []
        for l in range(64):
            row = l & 15
            ch = kk * 4 + (l >> 4)
            addrs.append(row * RBA + ((ch ^ swz_a(row, BK)) << 4))
        tot += cyc_b128(addrs)
    return tot, (BK // 32) * 4


def gen_gemm(name, *, K, lda, A, Ws, ldw, NW_TOT, BM, BNW, BK, NST, WGM, WGN, epi, out, ldo, resid=None,
             xcd_rows=None, RBWP=None, SK=1, part_off=0, flag_off=0):
    NWM = len(Ws)
    NWAVE = WGM * WGN
    RBA, RBW = BK * 2, BNW * 2
    RBWP = RBWP or RBW
    SUB = BK // 32
    TILES_M, TILES_N = S_LEN // BM, NW_TOT // BNW
    NTILES = TILES_M * TILES_N
    NWG = NTILES * SK
    KFULL = K
    K = K // SK
    assert NW_TOT % BNW == 0
    WTM = BM // WGM
    assert BNW % (16 * WGN) == 0 and WTM % 16 == 0
    WTNW = BNW // WGN
    TM, TNW = WTM // 16, WTNW // 16
    TN = TNW * NWM
    A_BYTES = BM * RBA
    W_BYTES = BK * RBWP
    STAGE = A_BYTES + NWM * W_BYTES
    assert A_BYTES % 1024 == 0 and W_BYTES % 1024 == 0
    nA, nW = A_BYTES // 1024, W_BYTES // 1024
    slots = [("A", q) for q in range(-(-nA // NWAVE))]
    for m in range(NWM):
        slots += [(f"W{m}", q) for q in range(-(-nW // NWAVE))]
    DPW = len(slots)
    NT = K // BK
    NU = K // 32
    swc, wcyc, wideal = pick_swz_w(RBWP, BK)
    acyc, aideal = check_swz_a(BK)
    sys.stderr.write(f"{name}: NWG={NWG} TM={TM} TN={TN} STAGE={STAGE} LDS={STAGE*NST} DPW={DPW} "
                     f"swzW={swc} cyc {wcyc}/{wideal} A cyc {acyc}/{aideal}\n")
    assert STAGE * NST <= 160 * 1024

    a = Asm()
    a.raw(f".globl {name}\n.p2align 8\n.type {name},@function")
    a.label(name)
    sA, sW, sO, sR = 4, 8, 16, 20
    sM0, sN0, sWM, sWN, sKA, sKW, sCNT, sT, sLC, sKS, sTILE = 24, 25, 26, 27, 28, 29, 30, 31, 32, 33, 34
    sP = 64
    sKB, sKE = 60, 62
    STAG = int(os.environ.get("STAG", 0))
    sJ = 36
    assert sJ + DPW <= 100
    a(f"s_cmp_ge_u32 s2, {NWG}")
    a(f"s_cbranch_scc1 L_{name}_end")
    load_ptr(a, sA, A[0])
    for m in range(NWM):
        load_ptr(a, sW + 4 * m, Ws[m])
    load_ptr(a, sO, out[0])
    if resid:
        load_ptr(a, sR, resid[0])
    if SK > 1:
        load_ptr(a, sP, "ws")
    per = NWG // 8
    xr = xcd_rows or 1
    pert = per // SK
    xc = pert // xr
    assert xr * xc == pert and TILES_M % xr == 0 and TILES_N % xc == 0 and (xr & (xr - 1)) == 0
    GN = TILES_N // xc
    assert (GN & (GN - 1)) == 0
    a(f"""
    s_and_b32 s{sCNT}, s2, 7
    s_lshr_b32 s{sT}, s2, 3
    s_and_b32 s{sKS}, s{sT}, {SK-1}
    s_lshr_b32 s{sT}, s{sT}, {int(math.log2(SK))}
    s_mul_i32 s{sTILE}, s{sCNT}, {pert}
    s_add_u32 s{sTILE}, s{sTILE}, s{sT}
    s_and_b32 s{sM0}, s{sT}, {xr-1}
    s_lshr_b32 s{sN0}, s{sT}, {int(math.log2(xr))}
    s_lshr_b32 s{sT}, s{sCNT}, {int(math.log2(GN))}   ; gm
    s_mul_i32 s{sT}, s{sT}, {xr}
    s_add_u32 s{sM0}, s{sM0}, s{sT}        ; tile_m
    s_and_b32 s{sT}, s{sCNT}, {GN-1}       ; gn
    s_mul_i32 s{sT}, s{sT}, {xc}
    s_add_u32 s{sN0}, s{sN0}, s{sT}        ; tile_n
    s_mul_i32 s{sM0}, s{sM0}, {BM}
    s_mul_i32 s{sN0}, s{sN0}, {BNW}
    v_lshrrev_b32 v1, 6, v0
    s_nop 0
    v_readfirstlane_b32 s{sT}, v1
    v_and_b32 v0, 63, v0                   ; lane
    s_nop 3
    s_lshr_b32 s{sWM}, s{sT}, {int(math.log2(WGN))}
    s_and_b32 s{sWN}, s{sT}, {WGN-1}
    s_mul_i32 s{sKB}, s{sKS}, {K*2}
    s_mul_i32 s{sKB+1}, s{sKS}, {K*ldw*2}
    s_add_u32 s{sKE}, s{sKB}, {K*2}
    s_lshr_b32 s{sCNT}, s2, 3
    s_mul_i32 s{sCNT}, s{sCNT}, {STAG}
    s_mul_hi_u32 s{sKA}, s{sCNT}, {-(-(1<<32)//NT)}
    s_mul_i32 s{sKA}, s{sKA}, {NT}
    s_sub_u32 s{sCNT}, s{sCNT}, s{sKA}        ; start stage = (wg>>3)*STAG % NT
    s_mul_i32 s{sKA}, s{sCNT}, {BK*2}
    s_add_u32 s{sKA}, s{sKA}, s{sKB}
    s_mul_i32 s{sKW}, s{sCNT}, {BK*ldw*2}
    s_add_u32 s{sKW}, s{sKW}, s{sKB+1}
    s_waitcnt lgkmcnt(0)
    """)
    if SK > 1:
        srd(a, sP, "ws", 0, 256 << 20)
    assert (WGN & (WGN - 1)) == 0
    srd(a, sA, A[0], A[1], A[2])
    for m in range(NWM):
        srd(a, sW + 4 * m, Ws[m], 0, KFULL * ldw * 2)
    srd(a, sO, out[0], out[1], out[2])
    if resid:
        srd(a, sR, resid[0], resid[1], resid[2])

    v = 2
    vDMA = v; v += DPW
    vAad = v; v += SUB * NST
    PW = 8 if swc[2] is not None else 4
    nWv = min(PW, TNW)
    vWad = v; v += nWv * NST
    vtmp = v; v += 8
    v = (v + 3) // 4 * 4
    FR = (TM + TN) * 4
    vF = [v, v + FR]; v += 2 * FR
    nv = max(v, vF[0] + 64)
    assert nv <= 256, nv
    nacc = TM * TN * 4
    accum = (nv + 3) // 4 * 4
    assert accum + nacc <= 512

    t0, t1, t2, t3, t4 = vtmp, vtmp + 1, vtmp + 2, vtmp + 3, vtmp + 4
    for q, (kind, qq) in enumerate(slots):
        n = nA if kind == "A" else nW
        RB = RBA if kind == "A" else RBWP
        region = 0 if kind == "A" else A_BYTES + int(kind[1]) * W_BYTES
        M = magic_div(RB, max(A_BYTES, W_BYTES))
        a(f"""
        s_add_u32 s{sCNT}, s{sT}, {qq*NWAVE}
        s_min_u32 s{sCNT}, s{sCNT}, {n-1}
        s_lshl_b32 s{sCNT}, s{sCNT}, 10           ; j*1024
        s_add_u32 s{sJ+q}, s{sCNT}, {region}
        v_lshlrev_b32 v{t0}, 4, v0
        v_add_u32 v{t0}, s{sCNT}, v{t0}           ; p
        s_mov_b32 s{sCNT}, {M}
        v_mul_lo_u32 v{t1}, v{t0}, s{sCNT}
        v_lshrrev_b32 v{t1}, 20, v{t1}            ; row
        s_mov_b32 s{sCNT}, {RB}
        v_mul_lo_u32 v{t2}, v{t1}, s{sCNT}
        v_sub_u32 v{t2}, v{t0}, v{t2}             ; p%RB
        v_lshrrev_b32 v{t2}, 4, v{t2}             ; cpos
        """)
        if kind == "A":
            emit_swz_a(a, t3, t1, BK)
            a(f"""
            v_xor_b32 v{t2}, v{t2}, v{t3}
            v_add_u32 v{t1}, s{sM0}, v{t1}
            s_mov_b32 s{sCNT}, {lda*2}
            v_mul_lo_u32 v{t1}, v{t1}, s{sCNT}
            v_lshl_add_u32 v{vDMA+q}, v{t2}, 4, v{t1}
            """)
        else:
            a(f"v_mov_b32 v{t3}, 0")
            if swc[0] is not None:
                a(f"v_bfe_u32 v{t4}, v{t1}, {swc[0]}, 1")
                a(f"v_lshl_or_b32 v{t3}, v{t4}, 1, v{t3}")
            if swc[1] is not None:
                a(f"v_bfe_u32 v{t4}, v{t1}, {swc[1]}, 1")
                a(f"v_lshl_or_b32 v{t3}, v{t4}, 2, v{t3}")
            if swc[2] is not None:
                a(f"v_bfe_u32 v{t4}, v{t1}, {swc[2]}, 1")
                a(f"v_lshl_or_b32 v{t3}, v{t4}, 3, v{t3}")
            a(f"""
            v_xor_b32 v{t2}, v{t2}, v{t3}
            v_min_u32 v{t2}, {RBW//16-1}, v{t2}
            s_mov_b32 s{sCNT}, {ldw*2}
            v_mul_lo_u32 v{t1}, v{t1}, s{sCNT}
            v_lshl_add_u32 v{t1}, v{t2}, 4, v{t1}
            s_lshl_b32 s{sCNT}, s{sN0}, 1
            v_add_u32 v{vDMA+q}, s{sCNT}, v{t1}
            """)

    def emit_dma(stage_buf):
        for q, (kind, qq) in enumerate(slots):
            sr = sA if kind == "A" else sW + 4 * int(kind[1])
            so = sKA if kind == "A" else sKW
            a(f"s_add_u32 m0, s{sJ+q}, {stage_buf*STAGE}")
            a(f"buffer_load_dwordx4 v{vDMA+q}, s[{sr}:{sr+3}], s{so} offen lds")
        a(f"s_add_u32 s{sKA}, s{sKA}, {BK*2}")
        a(f"s_add_u32 s{sKW}, s{sKW}, {BK*ldw*2}")
        if STAG:
            a(f"s_cmp_ge_u32 s{sKA}, s{sKE}")
            a(f"s_cselect_b32 s{sKA}, s{sKB}, s{sKA}")
            a(f"s_cselect_b32 s{sKW}, s{sKB+1}, s{sKW}")

    a(f"""
    v_and_b32 v{t0}, 15, v0
    v_lshrrev_b32 v{t1}, 4, v0
    s_mul_i32 s{sCNT}, s{sWM}, {WTM}
    v_add_u32 v{t2}, s{sCNT}, v{t0}         ; row
    """)
    emit_swz_a(a, t3, t0, BK)
    for kk in range(SUB):
        a(f"""
        v_add_u32 v{t4}, {kk*4}, v{t1}
        v_xor_b32 v{t4}, v{t4}, v{t3}
        v_lshlrev_b32 v{t4}, 4, v{t4}
        v_mul_u32_u24 v{vAad+kk*NST}, {RBA}, v{t2}
        v_add_u32 v{vAad+kk*NST}, v{vAad+kk*NST}, v{t4}
        """)
        for st in range(1, NST):
            a(f"v_add_u32 v{vAad+kk*NST+st}, {st*STAGE}, v{vAad+kk*NST}")
    a(f"""
    v_bfe_u32 v{t0}, v0, 2, 2              ; r
    v_lshl_add_u32 v{t0}, v{t1}, 3, v{t0}  ; row = 8g + r
    v_and_b32 v{t2}, 3, v0                 ; c
    v_mov_b32 v{t3}, 0
    """)
    if swc[0] is not None:
        a(f"v_bfe_u32 v{t4}, v{t0}, {swc[0]}, 1")
        a(f"v_lshl_or_b32 v{t3}, v{t4}, 1, v{t3}")
    if swc[1] is not None:
        a(f"v_bfe_u32 v{t4}, v{t0}, {swc[1]}, 1")
        a(f"v_lshl_or_b32 v{t3}, v{t4}, 2, v{t3}")
    if swc[2] is not None:
        a(f"v_bfe_u32 v{t4}, v{t0}, {swc[2]}, 1")
        a(f"v_lshl_or_b32 v{t3}, v{t4}, 3, v{t3}")
    for row in range(BK):
        assert fsw(row, swc) == fsw((row % 32) & ~4, swc), "swizzle depends on row bit2/5"
    for i in range(nWv):
        a(f"""
        s_mul_i32 s{sCNT}, s{sWN}, {WTNW*2}
        s_add_u32 s{sCNT}, s{sCNT}, {i*32}
        v_lshlrev_b32 v{t4}, 3, v{t2}
        v_add_u32 v{t4}, s{sCNT}, v{t4}         ; cb
        v_lshrrev_b32 v{t1}, 4, v{t4}
        v_xor_b32 v{t1}, v{t1}, v{t3}
        v_and_b32 v{t4}, 15, v{t4}
        v_lshl_add_u32 v{t4}, v{t1}, 4, v{t4}
        v_mul_u32_u24 v{vWad+i*NST}, {RBWP}, v{t0}
        v_add_u32 v{vWad+i*NST}, v{vWad+i*NST}, v{t4}
        v_add_u32 v{vWad+i*NST}, {A_BYTES}, v{vWad+i*NST}
        """)
        for st in range(1, NST):
            a(f"v_add_u32 v{vWad+i*NST+st}, {st*STAGE}, v{vWad+i*NST}")

    def acc(tm, tn):
        i = (tm * TN + tn) * 4
        return f"a[{i}:{i+3}]"

    def emit_reads(u, fset):
        st = (u // SUB) % NST
        kk = u % SUB
        base = vF[fset]
        lst = []
        for tm in range(TM if 'noaread' not in FLAGS else 0):
            lst.append(f"ds_read_b128 v[{base+tm*4}:{base+tm*4+3}], v{vAad+kk*NST+st} offset:{tm*16*RBA}")
        for m in range(NWM if 'nowread' not in FLAGS else 0):
            for tn in range(TNW):
                i = tn % PW
                off = m * W_BYTES + kk * 32 * RBWP + (tn - i) * 32
                r = base + (TM + m * TNW + tn) * 4
                lst.append(f"ds_read_b64_tr_b16 v[{r}:{r+1}], v{vWad+i*NST+st} offset:{off}")
                lst.append(f"ds_read_b64_tr_b16 v[{r+2}:{r+3}], v{vWad+i*NST+st} offset:{off+4*RBWP}")
        return lst

    def emit_mfmas(fset):
        base = vF[fset]
        lst = []
        for tn in range(TN):
            for tm in range(TM):
                lst.append(f"v_mfma_f32_16x16x32_bf16 {acc(tm,tn)}, v[{base+(TM+tn)*4}:{base+(TM+tn)*4+3}], "
                           f"v[{base+tm*4}:{base+tm*4+3}], {acc(tm,tn)}")
        return lst

    def stamp(i):
        if 'stamp' in FLAGS:
            a(f"s_memtime s[{70+4*i}:{71+4*i}]")
            a(f"s_memrealtime s[{72+4*i}:{73+4*i}]")
            a("s_waitcnt lgkmcnt(0)")
    stamp(0)
    npre = min(NST, NT)
    for st in range(npre):
        emit_dma(st)
    for i in range(nacc):
        a(f"v_accvgpr_write_b32 a{i}, 0")
    a(f"s_waitcnt vmcnt({(npre-1)*DPW})")
    a("s_barrier")
    stamp(1)
    for l in emit_reads(0, 0):
        a(l)

    def substep(u, issued):
        fset = u % 2
        mf = emit_mfmas(fset)
        if 'nomfma' in FLAGS:
            mf = []
        nxt = u + 1
        a("s_waitcnt lgkmcnt(0)")
        if nxt >= NU:
            for l in mf:
                a(l)
            return
        newstage = (nxt % SUB == 0)
        nb = 2 if newstage else 0
        for l in mf[:nb]:
            a(l)
        if newstage:
            t = u // SUB
            if 'nodma' not in FLAGS:
                a(f"s_waitcnt vmcnt({(issued - (t + 1)) * DPW})")
            if 'nobar' not in FLAGS:
                a("s_barrier")
            if t + NST <= NT - 1 and 'nodma' not in FLAGS:
                emit_dma((t + NST) % NST)
        rd = emit_reads(nxt, 1 - fset)
        i = 0
        for l in mf[nb:]:
            if i < len(rd):
                a(rd[i]); i += 1
            a(l)
        while i < len(rd):
            a(rd[i]); i += 1

    P = SUB * NST if (SUB * NST) % 2 == 0 else 2 * SUB * NST
    nloop = 0
    if NU > 64:
        nloop = ((NT - NST) * SUB) // P
    u = 0
    if nloop >= 2:
        a(f"s_mov_b32 s{sLC}, {nloop}")
        a.label(f"L_{name}_loop")
        for uu in range(P):
            substep(uu, npre - 1 + uu // SUB)
        a(f"s_sub_u32 s{sLC}, s{sLC}, 1")
        a(f"s_cmp_lg_u32 s{sLC}, 0")
        a(f"s_cbranch_scc1 L_{name}_loop")
        u = nloop * P
    while u < NU:
        substep(u, min(npre - 1 + u // SUB, NT - 1))
        u += 1

    a("s_nop 7")
    a("s_nop 7")
    stamp(2)
    e = vF[0]
    NACC4 = nacc // 4
    if SK > 1:
        PT = NWAVE * NACC4 * 1024
        a(f"""
        v_lshlrev_b32 v{t0}, 4, v0
        s_mul_i32 s{sCNT}, s{sT}, {NACC4*1024}
        v_add_u32 v{t0}, s{sCNT}, v{t0}
        s_cmp_eq_u32 s{sKS}, 0
        s_cbranch_scc1 L_{name}_gather
        s_mul_i32 s{sCNT}, s{sTILE}, {SK-1}
        s_add_u32 s{sCNT}, s{sCNT}, s{sKS}
        s_sub_u32 s{sCNT}, s{sCNT}, 1
        s_mul_i32 s{sCNT}, s{sCNT}, {PT}
        s_add_u32 s{sCNT}, s{sCNT}, {part_off}
        """)
        for i in range(NACC4):
            if i and i % 4 == 0:
                a(f"s_add_u32 s{sCNT}, s{sCNT}, 4096")
            a(f"buffer_store_dwordx4 a[{4*i}:{4*i+3}], v{t0}, s[{sP}:{sP+3}], s{sCNT} offen offset:{(i%4)*1024} sc0 sc1")
        a(f"""
        s_waitcnt vmcnt(0)
        s_barrier
        s_cmp_lg_u32 s{sT}, 0
        s_cbranch_scc1 L_{name}_end
        s_mul_i32 s{sCNT}, s{sTILE}, {SK}
        s_add_u32 s{sCNT}, s{sCNT}, s{sKS}
        s_lshl_b32 s{sCNT}, s{sCNT}, 2
        s_add_u32 s{sCNT}, s{sCNT}, {flag_off}
        v_mov_b32 v{t1}, 1
        v_mov_b32 v{t2}, 0
        v_cmp_eq_u32 vcc, 0, v0
        s_and_saveexec_b64 s[{sLC+4}:{sLC+5}], vcc
        buffer_store_dword v{t1}, v{t2}, s[{sP}:{sP+3}], s{sCNT} offen sc0 sc1
        s_waitcnt vmcnt(0)
        s_branch L_{name}_end
        """)
        a.label(f"L_{name}_gather")
        for ks in range(1, SK):
            a(f"""
            s_mul_i32 s{sCNT}, s{sTILE}, {SK}
            s_add_u32 s{sCNT}, s{sCNT}, {ks}
            s_lshl_b32 s{sCNT}, s{sCNT}, 2
            s_add_u32 s{sCNT}, s{sCNT}, {flag_off}
            v_mov_b32 v{t2}, 0
            """)
            a.label(f"L_{name}_poll{ks}")
            a(f"""
            buffer_load_dword v{t1}, v{t2}, s[{sP}:{sP+3}], s{sCNT} offen sc0 sc1
            s_waitcnt vmcnt(0)
            v_readfirstlane_b32 s{sLC}, v{t1}
            s_nop 3
            s_cmp_eq_u32 s{sLC}, 1
            s_cbranch_scc1 L_{name}_got{ks}
            s_sleep 2
            s_branch L_{name}_poll{ks}
            """)
            a.label(f"L_{name}_got{ks}")
            a(f"""
            s_mul_i32 s{sCNT}, s{sTILE}, {SK-1}
            s_add_u32 s{sCNT}, s{sCNT}, {ks-1}
            s_mul_i32 s{sCNT}, s{sCNT}, {PT}
            s_add_u32 s{sCNT}, s{sCNT}, {part_off}
            """)
            CH = 8
            for i0 in range(0, NACC4, CH):
                n = min(CH, NACC4 - i0)
                for i in range(n):
                    if i and i % 4 == 0:
                        a(f"s_add_u32 s{sCNT}, s{sCNT}, 4096")
                    a(f"buffer_load_dwordx4 v[{e+4*i}:{e+4*i+3}], v{t0}, s[{sP}:{sP+3}], s{sCNT} offen offset:{(i%4)*1024} sc0 sc1")
                a(f"s_add_u32 s{sCNT}, s{sCNT}, {1024*(n - 4*((n-1)//4))}")
                a("s_waitcnt vmcnt(0)")
                for i in range(n * 4):
                    a(f"v_accvgpr_read_b32 v{e+32+i%4}, a{i0*4+i}")
                    a(f"v_add_f32 v{e+32+i%4}, v{e+32+i%4}, v{e+i}")
                    a(f"v_accvgpr_write_b32 a{i0*4+i}, v{e+32+i%4}")
    BNO = BNW if epi == "swiglu" else BNW * NWM
    WNO = WTNW if epi == "swiglu" else WTNW * NWM
    LROW = BNO * 4 + 16
    assert BM * LROW <= STAGE * NST
    a("s_barrier")
    a(f"""
    v_and_b32 v{t0}, 15, v0
    v_lshrrev_b32 v{t1}, 4, v0
    s_mul_i32 s{sCNT}, s{sWM}, {WTM}
    v_add_u32 v{t0}, s{sCNT}, v{t0}
    v_mul_u32_u24 v{t0}, {LROW}, v{t0}
    s_mul_i32 s{sCNT}, s{sWN}, {WNO*4}
    v_lshl_add_u32 v{t0}, v{t1}, 4, v{t0}
    v_add_u32 v{t2}, s{sCNT}, v{t0}
    """)
    for tm in range(TM):
        ntile = TNW if epi == "swiglu" else TN
        for tn in range(ntile):
            i0 = (tm * TN + tn) * 4
            q = e + 16 * (tn % 2)
            for r in range(4):
                a(f"v_accvgpr_read_b32 v{q+r}, a{i0+r}")
            if epi == "swiglu":
                i1 = (tm * TN + tn + TNW) * 4
                for r in range(4):
                    a(f"v_accvgpr_read_b32 v{q+4+r}, a{i1+r}")
                for r in range(4):
                    a(f"v_mul_f32 v{q+8+r}, 0xbfb8aa3b, v{q+r}")
                for r in range(4):
                    a(f"v_exp_f32 v{q+8+r}, v{q+8+r}")
                a("s_nop 0")
                for r in range(4):
                    a(f"v_add_f32 v{q+8+r}, 1.0, v{q+8+r}")
                for r in range(4):
                    a(f"v_rcp_f32 v{q+8+r}, v{q+8+r}")
                a("s_nop 0")
                for r in range(4):
                    a(f"v_mul_f32 v{q+r}, v{q+r}, v{q+8+r}")
                for r in range(4):
                    a(f"v_mul_f32 v{q+r}, v{q+r}, v{q+4+r}")
            a(f"ds_write_b128 v{t2}, v[{q}:{q+3}] offset:{tm*16*LROW + tn*64}")
    a("s_waitcnt lgkmcnt(0)")
    a("s_barrier")
    C8 = BNO // 8
    NCH = BM * C8
    NTH = NWAVE * 64
    assert NCH % NTH == 0
    Mc = -(-(1 << 20) // C8)
    for c in range(NCH):
        assert (c * Mc) >> 20 == c // C8
    a(f"s_lshl_b32 s{sCNT}, s{sT}, 6")
    a(f"v_add_u32 v{t3}, s{sCNT}, v0")
    NIT = NCH // NTH
    GRP = 4
    for it0 in range(0, NIT, GRP):
        its = list(range(it0, min(NIT, it0 + GRP)))
        for j, it in enumerate(its):
            b = e + 16 * j
            a(f"""
            v_add_u32 v{t0}, {it*NTH}, v{t3}
            s_mov_b32 s{sCNT}, {Mc}
            v_mul_lo_u32 v{t1}, v{t0}, s{sCNT}
            v_lshrrev_b32 v{t1}, 20, v{t1}           ; row
            v_mul_u32_u24 v{t2}, {C8}, v{t1}
            v_sub_u32 v{t2}, v{t0}, v{t2}            ; col8
            v_mul_u32_u24 v{t0}, {LROW}, v{t1}
            v_lshl_add_u32 v{t0}, v{t2}, 5, v{t0}
            ds_read_b128 v[{b}:{b+3}], v{t0}
            ds_read_b128 v[{b+4}:{b+7}], v{t0} offset:16
            v_add_u32 v{t1}, s{sM0}, v{t1}
            s_mov_b32 s{sCNT}, {ldo*2}
            v_mul_lo_u32 v{t1}, v{t1}, s{sCNT}
            v_lshl_add_u32 v{t1}, v{t2}, 4, v{t1}
            s_lshl_b32 s{sCNT}, s{sN0}, 1
            v_add_u32 v{b+12}, s{sCNT}, v{t1}
            """)
            if epi == "resid":
                a(f"buffer_load_dwordx4 v[{b+8}:{b+11}], v{b+12}, s[{sR}:{sR+3}], 0 offen")
        a("s_waitcnt vmcnt(0) lgkmcnt(0)")
        for j, it in enumerate(its):
            b = e + 16 * j
            if epi == "resid":
                for r in range(4):
                    a(f"v_lshlrev_b32 v{t0}, 16, v{b+8+r}")
                    a(f"v_and_b32 v{t1}, 0xffff0000, v{b+8+r}")
                    a(f"v_add_f32 v{b+2*r}, v{b+2*r}, v{t0}")
                    a(f"v_add_f32 v{b+2*r+1}, v{b+2*r+1}, v{t1}")
            for r in range(4):
                a(f"v_cvt_pk_bf16_f32 v{b+8+r}, v{b+2*r}, v{b+2*r+1}")
            a(f"buffer_store_dwordx4 v[{b+8}:{b+11}], v{b+12}, s[{sO}:{sO+3}], 0 offen")
        a("s_nop 1")
    if 'stamp' in FLAGS:
        a("s_waitcnt vmcnt(0)")
        stamp(3)
        a(f"s_load_dwordx2 s[{sO}:{sO+1}], s[0:1], 64")
        a("s_waitcnt lgkmcnt(0)")
        a(f"s_mov_b32 s{sO+2}, 256")
        a(f"s_cmp_lg_u32 s2, 0")
        a(f"s_cbranch_scc1 L_{name}_end")
        a(f"s_cmp_lg_u32 s{sT}, 0")
        a(f"s_cbranch_scc1 L_{name}_end")
        for i in range(16):
            a(f"v_mov_b32 v{vF[0]}, s{70+i}")
            a(f"v_mov_b32 v{vF[0]+1}, {i*4}")
            a(f"buffer_store_dword v{vF[0]}, v{vF[0]+1}, s[{sO}:{sO+3}], 0 offen")
    a.label(f"L_{name}_end")
    a("s_endpgm")
    return a.text() + kd(name, accum + nacc, accum, 102), (NWG, NWAVE * 64, STAGE * NST)


def build(which=None):
    kernels = []
    kernels.append(("ln1_kernel",) + gen_ln("ln1_kernel", "x", 0, WS_XN, True))
    kernels.append(("qkv_kernel",) + gen_gemm(
        "qkv_kernel", K=D, lda=D, A=("ws", WS_XN, S_LEN * D * 2), Ws=["wqkv"], ldw=3 * D, NW_TOT=3 * D,
        BM=128, BNW=192, BK=int(os.environ.get("Q_BK",64)), NST=int(os.environ.get("Q_NST",3)), WGM=2, WGN=2, epi="store", out=("ws", WS_QKV, S_LEN * 3 * D * 2), ldo=3 * D,
        xcd_rows=8))
    from attn import gen_attn
    kernels.append(("attn_kernel",) + gen_attn("attn_kernel"))
    kernels.append(("wo_kernel",) + gen_gemm(
        "wo_kernel", K=D, lda=D, A=("ws", WS_O, S_LEN * D * 2), Ws=["wo"], ldw=D, NW_TOT=D,
        BM=128, BNW=64, BK=64, NST=int(os.environ.get("D_NST",4)), WGM=int(os.environ.get("D_WGM",4)), WGN=4//int(os.environ.get("D_WGM",4)), epi="resid", out=("ws", WS_H, S_LEN * D * 2), ldo=D,
        resid=("x", 0, S_LEN * D * 2), xcd_rows=4))
    kernels.append(("ln2_kernel",) + gen_ln("ln2_kernel", "ws", WS_H, WS_HN))
    kernels.append(("gu_kernel",) + gen_gemm(
        "gu_kernel", K=D, lda=D, A=("ws", WS_HN, S_LEN * D * 2), Ws=["w1", "w3"], ldw=F, NW_TOT=F,
        BM=256, BNW=112, BK=32, NST=4, WGM=4, WGN=1, epi="swiglu", out=("ws", WS_HACT, S_LEN * F * 2), ldo=F,
        xcd_rows=4, RBWP=256))
    kernels.append(("dn_kernel",) + gen_gemm(
        "dn_kernel", K=F, lda=F, A=("ws", WS_HACT, S_LEN * F * 2), Ws=["w2"], ldw=D, NW_TOT=D,
        BM=128, BNW=64, BK=64, NST=int(os.environ.get("D_NST",4)), WGM=int(os.environ.get("D_WGM",4)), WGN=4//int(os.environ.get("D_WGM",4)), epi="resid", out=("out", 0, S_LEN * D * 2), ldo=D,
        resid=("ws", WS_H, S_LEN * D * 2), xcd_rows=4))
    hdr = "; generated by gen/gen.py\n"
    for name, txt, (g, b, lds) in kernels:
        hdr += f"; @launch kernel={name} grid=({g},1,1) block=({b},1,1) lds={lds}\n"
    body = '.amdgcn_target "amdgcn-amd-amdhsa--gfx950"\n.text\n'
    for name, txt, _ in kernels:
        body += txt
    return hdr + body


if __name__ == "__main__":
    out = sys.argv[1] if len(sys.argv) > 1 else "sequential_preLN__sliding_block__glu_gated_swiglu__prompt.s"
    open(out, "w").write(build())
```
